```python
import torch

def _softmax(x, axis=-1):
    return torch.softmax(x, dim=axis)
def _gelu(x):
    return torch.nn.functional.gelu(x, approximate="tanh")
def _silu(x):
    return torch.nn.functional.silu(x)
def _sigmoid(x):
    return torch.sigmoid(x)
def _layernorm(x, axis=-1, eps=1e-5):
    m = x.mean(dim=axis, keepdim=True)
    v = x.var(dim=axis, keepdim=True, unbiased=False)
    return (x - m) / torch.sqrt(v + eps)
def _scatter_add(tgt, idx, src, axis=0):
    return tgt.clone().index_add_(axis, idx, src)
def _segment_sum(src, seg, n):
    out = torch.zeros((n,) + src.shape[1:], dtype=src.dtype)
    return out.index_add_(0, seg, src)
def _pad(x, pw):
    flat = tuple(v for pair in reversed(pw) for v in pair)
    return torch.nn.functional.pad(x, flat)

kernel_name = 'standalone__fft_conv__vision'

def setup_inputs():

    _w = (lambda a: (lambda t: t.to(torch.bfloat16) if t.is_floating_point() else t)(torch.as_tensor(a)))
    H = W = 224
    C = 96
    K = 7
    return {
        "x": _w((lambda *s: torch.randn(*s, dtype=torch.bfloat16) * 0.05)(1, H, W, C)),
        "w": _w((lambda *s: torch.randn(*s, dtype=torch.bfloat16) * 0.05)(K, K, C, C)),
    }

def reference(x, w):
    B, H, W, C = x.shape
    K = w.shape[0]
    wp = _pad(w, ((0, H - K), (0, W - K), (0, 0), (0, 0)))
    Xf = (lambda x, axes=(-2,-1): torch.fft.rfft2(x.float(), dim=axes))(x, axes=(1, 2))
    Wf = (lambda x, axes=(-2,-1): torch.fft.rfft2(x.float(), dim=axes))(wp, axes=(0, 1))
    Yf = torch.einsum('bhwi,hwio->bhwo', Xf, Wf)
    y = (lambda x, s, axes=(-2,-1): torch.fft.irfft2(x, s=s, dim=axes).to(torch.bfloat16))(Yf, (H, W), axes=(1, 2))
    return y
```

```python
import re

RE_REG = re.compile(r'^(v|a|s)(\d+)$')
RE_RNG = re.compile(r'^(v|a|s)\[(\d+):(\d+)\]$')


def regs_of(op):
    op = op.strip()
    if op.startswith('-'):
        op = op[1:]
    m = RE_REG.match(op)
    if m:
        return [(m.group(1), int(m.group(2)))]
    m = RE_RNG.match(op)
    if m:
        return [(m.group(1), i) for i in range(int(m.group(2)), int(m.group(3)) + 1)]
    if op == 'vcc':
        return [('s', 106), ('s', 107)]
    if op == 'exec':
        return [('x', 0)]
    if op == 'm0':
        return [('m', 0)]
    return []


TRANS = ('v_exp_', 'v_log_', 'v_rcp_', 'v_rsq_', 'v_sqrt_', 'v_sin_', 'v_cos_')


class Ins:
    __slots__ = ('text', 'op', 'kind', 'dst', 'src', 'srcc', 'store_data', 'lds_dma')

    def __init__(self, text):
        self.text = text
        t = text.split(';')[0].strip()
        parts = t.split(None, 1)
        self.op = parts[0]
        ops = [o.strip() for o in parts[1].split(',')] if len(parts) > 1 else []
        if ops:
            last = ops[-1].split()
            mods = last[1:]
            ops[-1] = last[0]
        else:
            mods = []
        op = self.op
        self.dst = []
        self.src = []
        self.srcc = []
        self.store_data = []
        self.lds_dma = False
        R = regs_of
        if op.startswith('v_mfma'):
            self.kind = 'mfma'
            self.dst = R(ops[0])
            self.src = R(ops[1]) + R(ops[2])
            self.srcc = R(ops[3])
        elif op.startswith('v_cmp'):
            self.kind = 'valu'
            self.dst = R(ops[0])
            for o in ops[1:]:
                self.src += R(o)
        elif op.startswith('v_readfirstlane') or op.startswith('v_readlane'):
            self.kind = 'valu'
            self.dst = R(ops[0])
            for o in ops[1:]:
                self.src += R(o)
        elif op.startswith('v_permlane') and 'swap' in op:
            self.kind = 'valu'
            self.dst = R(ops[0]) + R(ops[1])
            self.src = R(ops[0]) + R(ops[1])
        elif op.startswith('v_'):
            self.kind = 'valu'
            self.dst = R(ops[0])
            for o in ops[1:]:
                self.src += R(o)
            if op.startswith('v_fmac') or op.startswith('v_dot2c'):
                self.src += R(ops[0])
            if op.startswith('v_cndmask') and len(ops) == 3:
                self.src += R('vcc')
            if op.startswith('v_add_co') or op.startswith('v_addc_co'):
                self.dst = R(ops[0]) + R(ops[1])
                self.src = []
                for o in ops[2:]:
                    self.src += R(o)
        elif op.startswith('ds_read'):
            self.kind = 'ds'
            self.dst = R(ops[0])
            self.src = R(ops[1])
        elif op.startswith('ds_write'):
            self.kind = 'ds'
            for o in ops:
                self.src += R(o)
            self.store_data = R(ops[1])
        elif op.startswith('buffer_load') or op.startswith('global_load'):
            self.kind = 'vmem'
            if 'lds' in mods:
                self.lds_dma = True
                for o in ops:
                    self.src += R(o)
                self.src += [('m', 0)]
            else:
                self.dst = R(ops[0])
                for o in ops[1:]:
                    self.src += R(o)
        elif op.startswith('buffer_store'):
            self.kind = 'vmem'
            for o in ops:
                self.src += R(o)
            self.store_data = R(ops[0])
        elif op.startswith('global_store'):
            self.kind = 'vmem'
            for o in ops:
                self.src += R(o)
            self.store_data = R(ops[1])
        elif op.startswith('s_load') or op.startswith('s_memtime') or op.startswith('s_memrealtime'):
            self.kind = 'smem'
            self.dst = R(ops[0])
            for o in ops[1:]:
                self.src += R(o)
        elif op in ('s_waitcnt', 's_barrier', 's_nop', 's_endpgm', 's_branch', 's_setprio', 's_sleep') or op.startswith('s_cbranch'):
            self.kind = 'ctl'
        elif op.startswith('s_cmp') or op.startswith('s_bitcmp'):
            self.kind = 'salu'
            for o in ops:
                self.src += R(o)
        elif op.startswith('s_'):
            self.kind = 'salu'
            self.dst = R(ops[0])
            for o in ops[1:]:
                self.src += R(o)
            if 'saveexec' in op:
                self.dst += [('x', 0)]
        else:
            raise ValueError('unknown instruction: ' + text)

    def states(self):
        if self.op == 's_nop':
            return int(self.text.split()[1]) + 1
        return 1


class Asm:
    def __init__(self):
        self.lines = []
        self.reset()

    def reset(self):
        self.hist = []
        self.vm_n = 0
        self.vm_done = 0
        self.lg_n = 0
        self.lg_done = 0
        self.pend_vm = {}
        self.pend_lg = {}
        self.smem_pending = False

    def raw(self, s):
        self.lines.append(s)

    def comment(self, s):
        self.lines.append('    ; ' + s)

    def label(self, s):
        self.lines.append(s + ':')

    def wait_vm_seq(self, seq):
        if seq < self.vm_done:
            return
        n = self.vm_n - 1 - seq
        n = min(n, 63)
        self._emit('s_waitcnt vmcnt(%d)' % n)
        self.vm_done = self.vm_n - n

    def wait_lg_seq(self, seq):
        if seq < self.lg_done:
            return
        n = self.lg_n - 1 - seq
        n = min(n, 15)
        if self.smem_pending:
            n = 0
        self._emit('s_waitcnt lgkmcnt(%d)' % n)
        self.lg_done = self.lg_n - n
        if n == 0:
            self.smem_pending = False

    def wait_all_lg(self):
        self._emit('s_waitcnt lgkmcnt(0)')
        self.lg_done = self.lg_n
        self.smem_pending = False

    def wait_all_vm(self):
        self._emit('s_waitcnt vmcnt(0)')
        self.vm_done = self.vm_n

    def raw_wait_vm(self, n):
        self._emit('s_waitcnt vmcnt(%d)' % n)
        self.vm_done = max(self.vm_done, self.vm_n - n)

    def _need_states(self, ins):
        need = 0
        dist = 0
        touched = set(ins.src) | set(ins.srcc) | set(ins.dst)
        rd = set(ins.src) | set(ins.srcc)
        wr = set(ins.dst)
        for p in reversed(self.hist):
            req = 0
            pd = set(p.dst)
            if p.kind == 'valu':
                vw = set(r for r in pd if r[0] in 'va')
                sw = set(r for r in pd if r[0] == 's')
                if ins.kind == 'mfma' and vw & rd:
                    req = max(req, 2)
                if p.op.startswith(TRANS) and ins.kind in ('valu', 'mfma') and vw & rd:
                    req = max(req, 1)
                if ins.op.startswith('v_readfirstlane') or ins.op.startswith('v_readlane'):
                    if vw & rd:
                        req = max(req, 1)
                if ins.op.startswith('v_permlane') and vw & rd:
                    req = max(req, 2)
                if sw & rd:
                    if ins.kind == 'vmem':
                        req = max(req, 5)
                    elif ins.kind == 'valu':
                        req = max(req, 2)
                    elif ins.kind in ('salu', 'ctl'):
                        req = max(req, 4)
                if p.op.startswith('v_cmpx') and ins.kind == 'mfma':
                    req = max(req, 4)
            elif p.kind == 'mfma':
                if ins.kind == 'mfma':
                    if pd & set(ins.src):
                        req = max(req, 8)
                    ov = pd & set(ins.srcc)
                    if ov and set(ins.srcc) != pd:
                        req = max(req, 6)
                elif ins.kind in ('valu', 'vmem', 'ds'):
                    if pd & touched:
                        req = max(req, 8)
                    if ins.kind == 'valu' and set(p.srcc) & wr:
                        req = max(req, 3)
            elif p.kind == 'salu':
                if ('m', 0) in pd and ins.lds_dma:
                    req = max(req, 1)
            elif p.kind == 'vmem':
                if len(p.store_data) >= 3 and ins.kind == 'valu' and set(p.store_data) & wr:
                    req = max(req, 2)
                elif len(p.store_data) >= 3 and set(p.store_data) & wr:
                    req = max(req, 1)
            if req > dist:
                need = max(need, req - dist)
            dist += p.states()
            if dist > 20:
                break
        return need

    def _emit(self, text):
        ins = Ins(text)
        n = self._need_states(ins)
        while n > 0:
            k = min(n, 16)
            nop = Ins('s_nop %d' % (k - 1))
            self.lines.append('    ' + nop.text)
            self.hist.append(nop)
            n -= k
        self.lines.append('    ' + text)
        self.hist.append(ins)
        if len(self.hist) > 64:
            self.hist = self.hist[-32:]
        return ins

    def __call__(self, text):
        ins = Ins(text)
        touched = set(ins.src) | set(ins.srcc) | set(ins.dst)
        sv = max([self.pend_vm[r] for r in touched if r in self.pend_vm], default=-1)
        if sv >= 0:
            self.wait_vm_seq(sv)
        sl = max([self.pend_lg[r] for r in touched if r in self.pend_lg], default=-1)
        if sl >= 0:
            self.wait_lg_seq(sl)
        for r in touched:
            if r in self.pend_vm and self.pend_vm[r] < self.vm_done:
                del self.pend_vm[r]
            if r in self.pend_lg and self.pend_lg[r] < self.lg_done:
                del self.pend_lg[r]
        self._emit(text)
        if ins.kind == 'vmem':
            seq = self.vm_n
            self.vm_n += 1
            for r in ins.dst:
                self.pend_vm[r] = seq
            return seq
        if ins.kind == 'ds':
            seq = self.lg_n
            self.lg_n += 1
            for r in ins.dst:
                self.pend_lg[r] = seq
            return seq
        if ins.kind == 'smem':
            seq = self.lg_n
            self.lg_n += 1
            self.smem_pending = True
            for r in ins.dst:
                self.pend_lg[r] = seq
            return seq
        return None

    def text(self):
        return '\n'.join(self.lines) + '\n'


def v(i, n=1):
    return 'v%d' % i if n == 1 else 'v[%d:%d]' % (i, i + n - 1)


def a(i, n=1):
    return 'a%d' % i if n == 1 else 'a[%d:%d]' % (i, i + n - 1)


def s(i, n=1):
    return 's%d' % i if n == 1 else 's[%d:%d]' % (i, i + n - 1)


import struct


def fhex(x):
    return '0x%08x' % struct.unpack('<I', struct.pack('<f', x))[0]
```

```python
import os, sys
from asmlib import Asm, v, a, s, fhex

ENV = os.environ
def knob(name, default):
    return type(default)(ENV.get(name, default))

XF_OFF = 0
XF_BYTES = 32 * 4 * 86016
WF_OFF = 0xB00000
WF_BYTES = 64 * 129024
YF_OFF = 0x1400000
YF_BYTES = 256 * 43008
X_BYTES = 224 * 224 * 96 * 2
W_BYTES = 49 * 96 * 96 * 2
SRD3 = 0x00020000

ST1 = knob('ST1', '')
ST2 = knob('ST2', '')
ST3 = knob('ST3', '')


def srd(A, d, lo, hi, size, add=None):
    if add is None:
        A('s_mov_b32 %s, %s' % (s(d), s(lo)))
        A('s_and_b32 %s, %s, 0xffff' % (s(d + 1), s(hi)))
    else:
        A('s_add_u32 %s, %s, %s' % (s(d), s(lo), add))
        A('s_addc_u32 %s, %s, 0' % (s(d + 1), s(hi)))
        A('s_and_b32 %s, %s, 0xffff' % (s(d + 1), s(d + 1)))
    A('s_mov_b32 %s, %d' % (s(d + 2), size))
    A('s_mov_b32 %s, 0x%08x' % (s(d + 3), SRD3))


def kappa_delta(ks, e):
    return 32 * ks + 8 * (e >> 2) + (e & 3)


def gen_dft_frags(A, base, vA, vB, tmp, scale=None, vscale=None):
    for nt in range(4):
        for ks in range(2):
            d = base + (nt * 2 + ks) * 4
            for e in range(8):
                dl = kappa_delta(ks, e)
                if dl == 0:
                    A('v_cos_f32 %s, %s' % (v(tmp + e), v(vB + nt)))
                else:
                    A('v_fmamk_f32 %s, %s, %s, %s' % (v(tmp + e), v(vA + nt), fhex(float(dl)), v(vB + nt)))
            for e in range(8):
                if kappa_delta(ks, e) != 0:
                    A('v_cos_f32 %s, %s' % (v(tmp + e), v(tmp + e)))
            if vscale is not None:
                for e in range(8):
                    sc = vscale(nt, ks, e)
                    A('v_mul_f32 %s, %s, %s' % (v(tmp + e), v(sc), v(tmp + e)))
            for j in range(4):
                A('v_cvt_pk_bf16_f32 %s, %s, %s' % (v(d + j), v(tmp + 2 * j), v(tmp + 2 * j + 1)))


def gen_k1():
    A = Asm()
    A.raw('.globl k1_kernel')
    A.raw('.p2align 8')
    A.raw('.type k1_kernel,@function')
    A.label('k1_kernel')
    LBW = 19712
    WIMG = 12288
    sX, sW, sXF, sWF = 12, 16, 20, 24
    sWave, sLB, sH = 28, 29, 30
    A('s_load_dwordx4 s[4:7], s[0:1], 0')
    A('s_load_dwordx2 s[8:9], s[0:1], 32')
    A('s_cmp_ge_u32 s2, 252')
    A('s_cbranch_scc1 K1_end')
    vL, vN, vG, vR, vC = 0, 1, 2, 3, 4
    A('v_lshrrev_b32 v5, 6, v0')
    A('v_and_b32 v0, 63, v0')
    A('v_readfirstlane_b32 %s, v5' % s(sWave))
    A('v_and_b32 %s, 15, v0' % v(vN))
    A('v_lshrrev_b32 %s, 4, v0' % v(vG))
    A('v_bfe_u32 %s, v0, 2, 2' % v(vR))
    A('v_and_b32 %s, 3, v0' % v(vC))
    A('s_mul_i32 %s, %s, %d' % (s(sLB), s(sWave), LBW))
    A('s_lshr_b32 s31, s2, 1')
    A('s_mul_i32 s32, s31, 57')
    A('s_lshr_b32 s32, s32, 10')
    A('s_mul_i32 s33, s32, 18')
    A('s_sub_u32 s33, s31, s33')
    A('s_mul_i32 s34, s33, 43')
    A('s_lshr_b32 s34, s34, 8')
    A('s_mul_i32 s35, s34, 6')
    A('s_sub_u32 s35, s33, s35')
    A('s_mul_i32 s36, s32, %d' % (7 * 18432))
    A('s_mul_i32 s37, s34, 6144')
    A('s_add_u32 s36, s36, s37')
    A('s_lshl_b32 s37, s35, 5')
    A('s_add_u32 s36, s36, s37')
    vWoff = 5
    A('v_lshrrev_b32 v6, 1, v0')
    A('v_mul_u32_u24 v6, 192, v6')
    A('v_and_b32 v7, 1, v0')
    A('v_lshl_add_u32 %s, v7, 4, v6' % v(vWoff))
    vXo, vXo0, vXo3 = 8, 11, 14
    vRho = 17
    A('s_mul_i32 s38, %s, 56' % s(sWave))
    A('s_add_u32 s39, s38, 218')
    A('s_add_u32 s40, s38, 42')
    for i in range(3):
        A('v_add_u32 v20, %d, v0' % (64 * i))
        A('v_mul_u32_u24 v21, 171, v20')
        A('v_lshrrev_b32 %s, 11, v21' % v(vRho + i))
        A('v_mul_u32_u24 v21, 12, %s' % v(vRho + i))
        A('v_sub_u32 v20, v20, v21')
        A('v_lshlrev_b32 v20, 4, v20')
        A('v_and_b32 v21, 4, %s' % v(vRho + i))
        A('v_lshlrev_b32 v21, 3, v21')
        A('v_xor_b32 v20, v20, v21')
        A('v_mul_u32_u24 v21, 192, %s' % v(vRho + i))
        A('v_add_u32 %s, v20, v21' % v(vXo + i))
        for (dst, sb) in ((vXo0, 39), (vXo3, 40)):
            A('v_add_u32 v21, %s, %s' % (s(sb), v(vRho + i)))
            A('v_subrev_u32 v22, 224, v21')
            A('v_min_u32 v21, v21, v22')
            A('v_mul_u32_u24 v21, 192, v21')
            A('v_add_u32 %s, v20, v21' % v(dst + i))
    A('s_mul_i32 %s, s2, 43008' % s(sH))
    A('s_mul_i32 s41, s38, 192')
    A('s_add_u32 s41, s41, %s' % s(sH))
    A('s_add_u32 s42, s41, %d' % ((32 - 6) * 192))
    A('s_add_u32 s41, s41, %d' % ((16 - 6) * 192))
    A.wait_all_lg()
    srd(A, sW, 6, 7, W_BYTES)
    srd(A, sX, 4, 5, X_BYTES)
    for kw in range(7):
        A('s_add_u32 m0, %s, %d' % (s(sLB), WIMG + kw * 1056))
        if kw:
            A('s_add_u32 s36, s36, 18432')
        A('buffer_load_dwordx4 %s, %s, s36 offen lds' % (v(vWoff), s(sW, 4)))
    A('s_cmp_ge_u32 s2, 224')
    A('s_cbranch_scc1 K1_nox')
    order = [(1, vXo, 41), (0, vXo0, sH), (2, vXo, 42), (3, vXo3, sH)]
    for (j, vo, so) in order:
        for i in range(3):
            A('s_add_u32 m0, %s, %d' % (s(sLB), (3 * j + i) * 1024))
            A('buffer_load_dwordx4 %s, %s, %s offen lds' % (v(vo + i), s(sX, 4), s(so)))
    A('s_branch K1_x1')
    A.label('K1_nox')
    A.raw('    s_waitcnt vmcnt(0)')
    A.label('K1_x1')
    srd(A, sXF, 8, 9, XF_BYTES)
    srd(A, sWF, 8, 9, WF_BYTES, add='0x%x' % WF_OFF)
    vT = 24
    tmp = 32
    A('s_and_b32 s43, s2, 1')
    A('s_lshl_b32 s43, s43, 3')
    A('s_lshl_b32 s44, %s, 1' % s(sWave))
    A('s_add_u32 s43, s43, s44')
    A('v_bfe_u32 v40, %s, 1, 1' % v(vN))
    A('v_and_b32 v41, 1, %s' % v(vN))
    A('v_cvt_f32_u32 v41, v41')
    A('v_mul_f32 v41, 0.25, v41' if False else 'v_mul_f32 v41, 0x3e800000, v41')
    A('v_lshrrev_b32 v42, 2, %s' % v(vN))
    A('v_cmp_eq_u32 s[46:47], v42, %s' % v(vG))
    A('s_lshl_b32 s44, s43, 1')
    for x in range(2):
        A('v_add_u32 v42, s44, v40')
        if x:
            A('v_add_u32 v42, 2, v42')
        A('v_cvt_f32_u32 v42, v42')
        A('v_mul_f32 v42, %s, v42' % fhex(1.0 / 62))
        for kw in range(7):
            if kw == 0:
                A('v_cos_f32 %s, v41' % v(tmp))
            else:
                A('v_fmamk_f32 %s, v42, %s, v41' % (v(tmp + kw), fhex(float(kw))))
        for kw in range(1, 7):
            A('v_cos_f32 %s, %s' % (v(tmp + kw), v(tmp + kw)))
        A('v_mov_b32 %s, 0' % v(tmp + 7))
        for j in range(4):
            A('v_cvt_pk_bf16_f32 %s, %s, %s' % (v(vT + 4 * x + j), v(tmp + 2 * j), v(tmp + 2 * j + 1)))
        for j in range(4):
            A('v_cndmask_b32 %s, 0, %s, s[46:47]' % (v(vT + 4 * x + j), v(vT + 4 * x + j)))
    vF = 48
    vFA, vFB = 40, 44
    A('v_lshrrev_b32 v80, 1, %s' % v(vN))
    A('v_lshrrev_b32 v81, 1, %s' % v(vG))
    A('v_lshlrev_b32 v81, 4, v81')
    A('v_and_b32 v82, 1, %s' % v(vG))
    A('v_lshl_add_u32 v81, v82, 2, v81')
    A('v_cvt_f32_u32 v81, v81')
    A('v_and_b32 v82, 1, %s' % v(vN))
    A('v_cvt_f32_u32 v82, v82')
    A('v_mul_f32 v82, 0x3e800000, v82')
    for nt in range(4):
        A('v_add_u32 v83, %d, v80' % (8 * nt))
        A('v_cvt_f32_u32 v83, v83')
        A('v_mul_f32 %s, %s, v83' % (v(vFA + nt), fhex(1.0 / 62)))
        A('v_fma_f32 %s, %s, v81, v82' % (v(vFB + nt), v(vFA + nt)))
    gen_dft_frags(A, vF, vFA, vFB, tmp)
    A('v_cmp_gt_u32 vcc, 48, v0')
    for nt in range(4):
        d = vF + (nt * 2 + 1) * 4 + 3
        A('v_cndmask_b32 %s, 0, %s, vcc' % (v(d), v(d)))
    vB = 80
    vD = 112
    vWa, vWb = 20, 21
    A('v_mul_u32_u24 v22, 1056, %s' % v(vR))
    A('v_lshl_add_u32 v23, %s, 7, v22' % v(vG))
    A('v_lshl_add_u32 v23, %s, 3, v23' % v(vC))
    A('v_add_u32 %s, %s, v23' % (v(vWa), s(sLB)))
    A('v_add_u32 %s, %d, %s' % (v(vWa), WIMG, v(vWa)))
    A('v_add_u32 v22, 4, %s' % v(vR))
    A('v_min_u32 v22, 6, v22')
    A('v_sub_u32 v22, v22, %s' % v(vR))
    A('v_mul_u32_u24 v22, 1056, v22')
    A('v_add_u32 %s, %s, v22' % (v(vWb), v(vWa)))
    A.raw_wait_vm(12)
    for e in range(8):
        off = e * 32 if e < 4 else 512 + (e - 4) * 32
        A('ds_read_b64_tr_b16 %s, %s offset:%d' % (v(vB + 4 * e, 2), v(vWa), off))
        A('ds_read_b64_tr_b16 %s, %s offset:%d' % (v(vB + 4 * e + 2, 2), v(vWb), off))
    A('s_cmp_ge_u32 s35, 3')
    A('s_cselect_b32 s48, 1, 0')
    A('s_mul_i32 s49, s48, 3')
    A('s_sub_u32 s49, s35, s49')
    A('s_lshl_b32 s50, s43, 2')
    A('s_add_u32 s50, s50, s48')
    A('s_mul_i32 s50, s50, 21')
    A('s_mul_i32 s51, s34, 7')
    A('s_add_u32 s50, s50, s51')
    A('s_add_u32 s50, s50, s32')
    A('s_mul_i32 s50, s50, 6144')
    A('s_lshl_b32 s49, s49, 11')
    A('s_add_u32 s50, s50, s49')
    vL16 = 22
    A('v_lshlrev_b32 %s, 4, v0' % v(vL16))
    for x in range(2):
        for e in range(8):
            A('v_mfma_f32_16x16x32_bf16 %s, %s, %s, 0' % (v(vD + (x * 8 + e) * 4, 4), v(vT + 4 * x, 4), v(vB + 4 * e, 4)))
    vP = 176
    for x in range(2):
        for d in range(4):
            p = vP + (x * 4 + d) * 4
            for j in range(4):
                A('v_cvt_pk_bf16_f32 %s, %s, %s' % (v(p + j), v(vD + (x * 8 + 2 * j) * 4 + d), v(vD + (x * 8 + 2 * j + 1) * 4 + d)))
            if (x, d) != (0, 0) and d % 2 == 0:
                A('s_add_u32 s50, s50, 258048')
            A('buffer_store_dwordx4 %s, %s, %s, s50 offen offset:%d %s' % (v(p, 4), v(vL16), s(sWF, 4), (d & 1) * 1024, ST1))
    A('s_cmp_ge_u32 s2, 224')
    A('s_cbranch_scc1 K1_end')
    vXE, vXO = 20, 21
    A('v_lshrrev_b32 v23, 1, %s' % v(vG))
    A('v_lshlrev_b32 v23, 4, v23')
    A('v_add_u32 v23, v23, %s' % v(vR))
    A('v_and_b32 v24, 1, %s' % v(vG))
    A('v_lshl_add_u32 v23, v24, 2, v23')
    A('v_mul_u32_u24 v23, 192, v23')
    A('v_lshl_add_u32 v23, %s, 3, v23' % v(vC))
    A('v_add_u32 v23, %s, v23' % s(sLB))
    A('v_lshl_add_u32 %s, v24, 5, v23' % v(vXE))
    A('v_xor_b32 v24, 1, v24')
    A('v_lshl_add_u32 %s, v24, 5, v23' % v(vXO))
    vSo = 25
    A('v_lshrrev_b32 v23, 1, %s' % v(vN))
    A('s_mov_b32 s52, 344064')
    A('v_mul_lo_u32 v23, v23, s52')
    A('v_and_b32 v24, 1, %s' % v(vN))
    A('v_lshl_add_u32 v23, v24, 6, v23')
    A('v_lshl_add_u32 %s, %s, 4, v23' % (v(vSo), v(vG)))
    A('s_mul_i32 s53, %s, 86016' % s(sWave))
    A('s_lshl_b32 s54, s2, 7')
    A('s_add_u32 s53, s53, s54')
    vA = 80
    vAcc = 128
    for ks in range(2):
        A.raw_wait_vm(8 + (6 if ks == 0 else 0))
        for t6 in range(6):
            base = vXE if t6 % 2 == 0 else vXO
            for e1 in range(2):
                off = ks * 6144 + e1 * 1536 + (t6 & ~1) * 32
                A('ds_read_b64_tr_b16 %s, %s offset:%d' % (v(vA + ks * 24 + t6 * 4 + 2 * e1, 2), v(base), off))
        if ks == 0:
            for t6 in range(6):
                for nt in range(4):
                    d = vAcc + (t6 * 4 + nt) * 4
                    A('v_mfma_f32_16x16x32_bf16 %s, %s, %s, 0' % (v(d, 4), v(vA + t6 * 4, 4), v(vF + (nt * 2) * 4, 4)))
    vP2 = 224
    pend = []
    cnt = 0
    def flush_one():
        nonlocal cnt
        (Ac, nt) = pend.pop(0)
        p = vP2 + (cnt % 4) * 4
        cnt += 1
        d0 = vAcc + ((2 * Ac) * 4 + nt) * 4
        d1 = vAcc + ((2 * Ac + 1) * 4 + nt) * 4
        A('v_cvt_pk_bf16_f32 %s, %s, %s' % (v(p), v(d0), v(d0 + 1)))
        A('v_cvt_pk_bf16_f32 %s, %s, %s' % (v(p + 1), v(d0 + 2), v(d0 + 3)))
        A('v_cvt_pk_bf16_f32 %s, %s, %s' % (v(p + 2), v(d1), v(d1 + 1)))
        A('v_cvt_pk_bf16_f32 %s, %s, %s' % (v(p + 3), v(d1 + 2), v(d1 + 3)))
        A('s_add_u32 s54, s53, %d' % (nt * 8 * 344064 + Ac * 28672))
        A('buffer_store_dwordx4 %s, %s, %s, s54 offen %s' % (v(p, 4), v(vSo), s(sXF, 4), ST1))
    for Ac in range(3):
        for nt in range(4):
            for t6 in (2 * Ac, 2 * Ac + 1):
                d = vAcc + (t6 * 4 + nt) * 4
                A('v_mfma_f32_16x16x32_bf16 %s, %s, %s, %s' % (v(d, 4), v(vA + 24 + t6 * 4, 4), v(vF + (nt * 2 + 1) * 4, 4), v(d, 4)))
            pend.append((Ac, nt))
            if len(pend) > 3:
                flush_one()
    while pend:
        flush_one()
    A.label('K1_end')
    A('s_endpgm')
    return A.text(), dict(vgpr=240, sgpr=64, accum=240), 4 * LBW


def gen_k3():
    A = Asm()
    A.raw('.globl k3_kernel')
    A.raw('.p2align 8')
    A.raw('.type k3_kernel,@function')
    A.label('k3_kernel')
    LBW = 12288
    sY, sO = 12, 16
    sWave, sLB = 28, 29
    A('s_load_dwordx2 s[4:5], s[0:1], 16')
    A('s_load_dwordx2 s[8:9], s[0:1], 32')
    A('s_cmp_ge_u32 s2, 224')
    A('s_cbranch_scc1 K3_end')
    vN, vG, vR, vC = 1, 2, 3, 4
    A('v_lshrrev_b32 v5, 6, v0')
    A('v_and_b32 v0, 63, v0')
    A('v_readfirstlane_b32 %s, v5' % s(sWave))
    A('v_and_b32 %s, 15, v0' % v(vN))
    A('v_lshrrev_b32 %s, 4, v0' % v(vG))
    A('v_bfe_u32 %s, v0, 2, 2' % v(vR))
    A('v_and_b32 %s, 3, v0' % v(vC))
    A('s_mul_i32 %s, %s, %d' % (s(sLB), s(sWave), LBW))
    A('s_lshr_b32 s30, s2, 1')
    A('s_lshl_b32 s30, s30, 1')
    A('s_and_b32 s31, %s, 1' % s(sWave))
    A('s_add_u32 s30, s30, s31')
    A('s_and_b32 s31, s2, 1')
    A('s_lshl_b32 s31, s31, 1')
    A('s_lshr_b32 s32, %s, 1' % s(sWave))
    A('s_add_u32 s31, s31, s32')
    vYo = 8
    for i in range(3):
        A('v_add_u32 v20, %d, v0' % (64 * i))
        A('v_mul_u32_u24 v21, 171, v20')
        A('v_lshrrev_b32 v21, 12, v21')
        A('v_mul_u32_u24 v22, 24, v21')
        A('v_sub_u32 v20, v20, v22')
        A('v_bfe_u32 v22, v21, 1, 1')
        A('v_xor_b32 v20, v20, v22')
        A('v_cmp_le_u32 vcc, 12, v20')
        A('v_cndmask_b32 v22, 0, 1, vcc')
        A('v_lshl_add_u32 v21, v21, 1, v22')
        A('v_mul_u32_u24 v21, 43008, v21')
        A('v_mul_u32_u24 v22, 12, v22')
        A('v_sub_u32 v20, v20, v22')
        A('v_lshl_add_u32 %s, v20, 4, v21' % v(vYo + i))
    A('s_mul_i32 s33, s31, %d' % (32 * 86016))
    A('s_mul_i32 s34, s30, 192')
    A('s_add_u32 s33, s33, s34')
    A.wait_all_lg()
    srd(A, sY, 8, 9, YF_BYTES, add='0x%x' % YF_OFF)
    for j in range(4):
        for i in range(3):
            A('s_add_u32 m0, %s, %d' % (s(sLB), (3 * j + i) * 1024))
            A('buffer_load_dwordx4 %s, %s, s33 offen lds' % (v(vYo + i), s(sY, 4)))
        if j < 3:
            A('s_add_u32 s33, s33, %d' % (8 * 86016))
    srd(A, sO, 4, 5, X_BYTES)
    vGf = 48
    tmp = 32
    vA_, vB_ = 40, 44
    A('v_lshrrev_b32 v80, 1, %s' % v(vG))
    A('v_lshlrev_b32 v80, 3, v80')
    A('v_and_b32 v81, 1, %s' % v(vG))
    A('v_lshl_add_u32 v80, v81, 1, v80')
    A('v_cvt_f32_u32 v80, v80')
    for nt in range(4):
        A('v_add_u32 v83, %d, %s' % (6 + 16 * nt, v(vN)))
        A('v_cvt_f32_u32 v83, v83')
        A('v_mul_f32 %s, %s, v83' % (v(vA_ + nt), fhex(1.0 / 62)))
        A('v_mul_f32 %s, %s, v80' % (v(vB_ + nt), v(vA_ + nt)))
    A('v_mov_b32 v84, %s' % fhex(2.0 / 62))
    A('v_mov_b32 v85, %s' % fhex(1.0 / 62))
    A('v_cmp_gt_u32 vcc, 16, v0')
    A('v_cndmask_b32 v86, v84, v85, vcc')
    A('v_cmp_le_u32 vcc, 48, v0')
    A('v_cndmask_b32 v87, v84, v85, vcc')
    for nt in range(4):
        for ks in range(2):
            d = vGf + (nt * 2 + ks) * 4
            for e in range(8):
                df = 16 * ks + 4 * (e >> 2) + ((e & 3) >> 1)
                p = e & 1
                if df == 0:
                    src = v(vB_ + nt)
                    if p:
                        A('v_add_f32 %s, 0x3e800000, %s' % (v(tmp + e), src))
                    else:
                        A('v_mov_b32 %s, %s' % (v(tmp + e), src))
                else:
                    if p == 0:
                        A('v_fmamk_f32 %s, %s, %s, %s' % (v(tmp + e), v(vA_ + nt), fhex(float(df)), v(vB_ + nt)))
                    else:
                        A('v_add_f32 %s, 0x3e800000, %s' % (v(tmp + e), v(tmp + e - 1)))
            for e in range(8):
                A('v_cos_f32 %s, %s' % (v(tmp + e), v(tmp + e)))
            for e in range(8):
                w = 84
                if ks == 0 and e < 2:
                    w = 86
                if ks == 1 and e >= 6:
                    w = 87
                A('v_mul_f32 %s, %s, %s' % (v(tmp + e), v(w), v(tmp + e)))
            for j in range(4):
                A('v_cvt_pk_bf16_f32 %s, %s, %s' % (v(d + j), v(tmp + 2 * j), v(tmp + 2 * j + 1)))
    vY0, vY1 = 20, 21
    A('v_lshrrev_b32 v23, 1, %s' % v(vG))
    A('v_lshlrev_b32 v23, 3, v23')
    A('v_and_b32 v24, 1, %s' % v(vG))
    A('v_lshl_add_u32 v23, v24, 1, v23')
    A('v_lshrrev_b32 v25, 1, %s' % v(vR))
    A('v_add_u32 v23, v23, v25')
    A('v_mul_u32_u24 v23, 384, v23')
    A('v_lshl_add_u32 v23, %s, 5, v23' % v(vC))
    A('v_and_b32 v25, 1, %s' % v(vR))
    A('v_lshl_add_u32 v23, v25, 3, v23')
    A('v_add_u32 v23, %s, v23' % s(sLB))
    A('v_lshl_add_u32 %s, v24, 4, v23' % v(vY0))
    A('v_xor_b32 v24, 1, v24')
    A('v_lshl_add_u32 %s, v24, 4, v23' % v(vY1))
    vSo, vSo3 = 25, 26
    A('v_mul_u32_u24 v23, 192, %s' % v(vN))
    A('v_lshl_add_u32 %s, %s, 4, v23' % (v(vSo), v(vG)))
    A('v_cmp_gt_u32 vcc, 8, %s' % v(vN))
    A('v_mov_b32 v23, 0x40000000')
    A('v_cndmask_b32 %s, v23, %s, vcc' % (v(vSo3), v(vSo)))
    A('s_mul_i32 s35, s30, 43008')
    A('s_mul_i32 s36, s31, %d' % (56 * 192))
    A('s_add_u32 s35, s35, s36')
    vA = 80
    vAcc = 128
    for ks in range(2):
        A.raw_wait_vm(6 if ks == 0 else 0)
        for t6 in range(6):
            Ac, b = t6 >> 1, t6 & 1
            base = vY0 if b == 0 else vY1
            for e1 in range(2):
                off = ks * 6144 + e1 * 1536 + Ac * 128
                A('ds_read_b64_tr_b16 %s, %s offset:%d' % (v(vA + ks * 24 + t6 * 4 + 2 * e1, 2), v(base), off))
        if ks == 0:
            for t6 in range(6):
                for nt in range(4):
                    d = vAcc + (t6 * 4 + nt) * 4
                    A('v_mfma_f32_16x16x32_bf16 %s, %s, %s, 0' % (v(d, 4), v(vA + t6 * 4, 4), v(vGf + (nt * 2) * 4, 4)))
    vP2 = 224
    pend = []
    cnt = 0
    def flush_one():
        nonlocal cnt
        (Ac, nt) = pend.pop(0)
        p = vP2 + (cnt % 4) * 4
        cnt += 1
        d0 = vAcc + ((2 * Ac) * 4 + nt) * 4
        d1 = vAcc + ((2 * Ac + 1) * 4 + nt) * 4
        A('v_cvt_pk_bf16_f32 %s, %s, %s' % (v(p), v(d0), v(d0 + 1)))
        A('v_cvt_pk_bf16_f32 %s, %s, %s' % (v(p + 1), v(d0 + 2), v(d0 + 3)))
        A('v_cvt_pk_bf16_f32 %s, %s, %s' % (v(p + 2), v(d1), v(d1 + 1)))
        A('v_cvt_pk_bf16_f32 %s, %s, %s' % (v(p + 3), v(d1 + 2), v(d1 + 3)))
        A('s_add_u32 s37, s35, %d' % (nt * 3072))
        A('buffer_store_dwordx4 %s, %s, %s, s37 offen offset:%d %s' % (v(p, 4), v(vSo3 if nt == 3 else vSo), s(sO, 4), Ac * 64, ST3))
    for nt in range(4):
        for Ac in range(3):
            for t6 in (2 * Ac, 2 * Ac + 1):
                d = vAcc + (t6 * 4 + nt) * 4
                A('v_mfma_f32_16x16x32_bf16 %s, %s, %s, %s' % (v(d, 4), v(vA + 24 + t6 * 4, 4), v(vGf + (nt * 2 + 1) * 4, 4), v(d, 4)))
            pend.append((Ac, nt))
            if len(pend) > 3:
                flush_one()
    while pend:
        flush_one()
    A.label('K3_end')
    A('s_endpgm')
    return A.text(), dict(vgpr=240, sgpr=64, accum=240), 4 * LBW


REG = 38400
EXO = 3 * REG
WD = knob('WD', 3)


def gen_k2():
    A = Asm()
    A.raw('.globl k2_kernel')
    A.raw('.p2align 8')
    A.raw('.type k2_kernel,@function')
    A.label('k2_kernel')
    sX, sW, sY = 12, 16, 20
    sWave = 28
    A('s_load_dwordx2 s[8:9], s[0:1], 32')
    A('s_cmp_ge_u32 s2, 256')
    A('s_cbranch_scc1 K2_end')
    vN, vG = 1, 2
    A('v_lshrrev_b32 v5, 6, v0')
    A('v_and_b32 v0, 63, v0')
    A('v_readfirstlane_b32 %s, v5' % s(sWave))
    A('v_and_b32 %s, 15, v0' % v(vN))
    A('v_lshrrev_b32 %s, 4, v0' % v(vG))
    A('s_and_b32 s30, s2, 7')
    A('s_lshl_b32 s30, s30, 2')
    A('s_lshr_b32 s31, s2, 6')
    A('s_add_u32 s30, s30, s31')
    A('s_bfe_u32 s31, s2, 0x20004')
    A('s_bfe_u32 s32, s2, 0x10003')
    A('s_lshl_b32 s33, s30, 2')
    A('s_add_u32 s33, s33, s31')
    A('s_mul_i32 s33, s33, 86016')
    A('s_lshl_b32 s34, s30, 1')
    A('s_add_u32 s34, s34, s32')
    A('s_mul_i32 s34, s34, 129024')
    A('s_add_u32 s34, s34, 0x%x' % WF_OFF)
    A('s_lshl_b32 s35, s31, 5')
    A('s_add_u32 s35, s35, s30')
    A('s_lshl_b32 s35, s35, 1')
    A('s_add_u32 s35, s35, s32')
    A('s_mul_i32 s35, s35, 43008')
    A('s_add_u32 s35, s35, 0x%x' % YF_OFF)
    A('s_and_b32 s36, %s, 1' % s(sWave))
    A('s_lshr_b32 s37, %s, 1' % s(sWave))
    mask = 0
    for k in range(6):
        mask |= 0xFF << (10 * k)
    A('s_mov_b32 s40, 0x%08x' % (mask & 0xffffffff))
    A('s_mov_b32 s41, 0x%08x' % (mask >> 32))
    vDo = 3
    A('v_mul_u32_u24 v5, 205, v0')
    A('v_lshrrev_b32 v5, 11, v5')
    A('v_mul_u32_u24 v6, 10, v5')
    A('v_sub_u32 v6, v0, v6')
    A('v_lshlrev_b32 v6, 4, v6')
    A('v_lshl_add_u32 %s, v5, 7, v6' % v(vDo))
    vL16 = 4
    A('v_lshlrev_b32 %s, 4, v0' % v(vL16))
    vXB = 5
    A('v_mul_u32_u24 v8, %d, %s' % (7 * 160, v(vN)))
    A('v_lshl_add_u32 v8, %s, 4, v8' % v(vG))
    A('s_mul_i32 s38, s36, %d' % (112 * 160))
    A('v_add_u32 %s, s38, v8' % v(vXB))
    A('v_add_u32 %s, %d, %s' % (v(vXB + 1), REG, v(vXB)))
    A('v_add_u32 %s, %d, %s' % (v(vXB + 2), 2 * REG, v(vXB)))
    vYo = 9
    A('v_mul_u32_u24 v9, %d, %s' % (7 * 192, v(vN)))
    A('v_lshl_add_u32 v9, %s, 4, v9' % v(vG))
    A('s_mul_i32 s38, s36, %d' % (112 * 192))
    A('v_add_u32 %s, s38, v9' % v(vYo))
    vEx = 10
    A('v_lshlrev_b32 v10, 3, v0')
    A('s_mul_i32 s38, s36, %d' % (7 * 512))
    A('s_add_u32 s38, s38, %d' % EXO)
    A('v_add_u32 %s, s38, v10' % v(vEx))
    A('s_mul_i32 s42, %s, 960' % s(sWave))
    A('s_mul_i32 s43, %s, 768' % s(sWave))
    A('s_sub_u32 s43, s43, 768')
    A('s_cmp_eq_u32 %s, 0' % s(sWave))
    A('s_cselect_b32 s44, %d, s43' % (218 * 128))
    A('s_add_u32 s43, s43, %d' % (4 * 768))
    A('s_lshl_b32 s45, s37, 11')
    A.wait_all_lg()
    srd(A, sX, 8, 9, 86016, add='s33')
    srd(A, sW, 8, 9, 129024, add='s34')

    def dma_x(c, k):
        A('s_add_u32 m0, s42, %d' % (c * REG + k * 4 * 960))
        if k == 0:
            A('s_add_u32 s46, s44, %d' % (c * 28672))
        else:
            A('s_add_u32 s46, s43, %d' % (c * 28672 + (k - 1) * 4 * 768))
        A('s_mov_b64 exec, s[40:41]')
        seq = A('buffer_load_dwordx4 %s, %s, s46 offen lds' % (v(vDo), s(sX, 4)))
        A('s_mov_b64 exec, -1')
        return seq

    vAcc = 12
    vW = 96
    vNW = vW + 16 * WD
    vPk = vNW + 8
    nv = vPk + 16

    def wreg(step, fr):
        return vW + (step % WD) * 16 + fr * 4

    def load_w(step):
        A('s_add_u32 s47, s45, %d' % (step * 6144))
        for fr in range(4):
            A('buffer_load_dwordx4 %s, %s, %s, s47 offen offset:%d' % (v(wreg(step, fr), 4), v(vL16), s(sW, 4), fr * 1024))

    def xreg(p, sp):
        return (p * 13 + sp) * 4

    def read_x(c, p, sp):
        A('ds_read_b128 %s, %s offset:%d' % (a(xreg(p, sp), 4), v(vXB + c), sp * 160 + p * 64))

    def acc(col, j):
        return vAcc + (col * 7 + j) * 4

    last = None
    for k in range(10):
        last = dma_x(0, k)
    x_seq = {0: last}
    for st in range(WD - 1):
        load_w(st)
    srd(A, sY, 8, 9, 43008, add='s35')
    A('s_cmp_eq_u32 s37, 1')
    A('s_cbranch_scc1 K2_q1')
    state0 = (list(A.hist), A.vm_n, A.vm_done, A.lg_n, A.lg_done, dict(A.pend_vm), dict(A.pend_lg))

    for q in range(2):
        if q == 1:
            A.label('K2_q1')
            A.hist, A.vm_n, A.vm_done, A.lg_n, A.lg_done, A.pend_vm, A.pend_lg = list(state0[0]), state0[1], state0[2], state0[3], state0[4], dict(state0[5]), dict(state0[6])
            A.smem_pending = False
        xs = dict(x_seq)
        A.wait_vm_seq(xs[0])
        A('s_barrier')
        for sp in range(12, 5, -1):
            read_x(0, 0, sp)
            read_x(0, 1, sp)
        first = set()
        for step in range(21):
            c, kh = divmod(step, 7)
            nw = vNW + (step % 2) * 4
            F = [wreg(step, i) for i in range(4)]
            fill = {}
            def at(pos, fn):
                fill.setdefault(pos, []).append(fn)
            if q == 0:
                negs = [(nw, F[1]), (F[3], F[3])]
                prods = [[(F[0], 0), (nw, 1)], [(F[1], 0), (F[0], 1)], [(F[2], 0), (F[3], 1)]]
            else:
                negs = [(nw, F[3])]
                prods = [[(F[1], 0), (F[0], 1)], [(F[2], 0), (nw, 1)], [(F[3], 0), (F[2], 1)]]
            for (dst, src) in negs:
                for i in range(4):
                    A('v_xor_b32 %s, 0x80008000, %s' % (v(dst + i), v(src + i)))
            if step + WD - 1 < 21:
                at(2, lambda st=step + WD - 1: load_w(st))
            if kh < 6:
                at(6, lambda c=c, sp=5 - kh: (read_x(c, 0, sp), read_x(c, 1, sp)))
            if c < 2 and kh < 4:
                ks = [[0, 1, 2], [3, 4, 5], [6, 7], [8, 9]][kh]
                for i, k in enumerate(ks):
                    def f(c=c, k=k):
                        xs[c + 1] = dma_x(c + 1, k)
                    at(12 + 8 * i, f)
            if c < 2 and kh == 5:
                def bar(c=c):
                    A.wait_vm_seq(xs[c + 1])
                    A('s_barrier')
                at(14, bar)
                for i, sp in enumerate((12, 11, 10)):
                    at(18 + 6 * i, lambda c=c, sp=sp: (read_x(c + 1, 0, sp), read_x(c + 1, 1, sp)))
            if c < 2 and kh == 6:
                for i, sp in enumerate((9, 8, 7, 6)):
                    at(8 + 6 * i, lambda c=c, sp=sp: (read_x(c + 1, 0, sp), read_x(c + 1, 1, sp)))
            seqm = []
            for idx, j in enumerate(range(6, -1, -1)):
                sp = j - kh + 6
                if idx % 2 == 0:
                    order = [(0, 0), (1, 0), (2, 0), (2, 1), (1, 1), (0, 1)]
                else:
                    order = [(0, 1), (1, 1), (2, 1), (2, 0), (1, 0), (0, 0)]
                for (col, pi) in order:
                    w, p = prods[col][pi]
                    seqm.append((col, j, w, p, sp))
            for pos, (col, j, w, p, sp) in enumerate(seqm):
                for fn in fill.get(pos, []):
                    fn()
                d = acc(col, j)
                srcc = v(d, 4) if (col, j) in first else '0'
                first.add((col, j))
                A('v_mfma_f32_16x16x32_bf16 %s, %s, %s, %s' % (v(d, 4), v(w, 4), a(xreg(p, sp), 4), srcc))
        csplit = 2 if q == 0 else 0
        send = range(4, 7) if q == 0 else range(0, 4)
        keep = range(0, 4) if q == 0 else range(4, 7)
        for j in send:
            d = acc(csplit, j)
            A('v_cvt_pk_bf16_f32 %s, %s, %s' % (v(d), v(d), v(d + 1)))
            A('v_cvt_pk_bf16_f32 %s, %s, %s' % (v(d + 1), v(d + 2), v(d + 3)))
            A('ds_write_b64 %s, %s offset:%d' % (v(vEx), v(d, 2), j * 512))
        cre, cim, aa = (0, 1, 0) if q == 0 else (1, 2, 2)
        n = 0
        for j in range(7):
            p = vPk + (n % 4) * 4
            n += 1
            dr, di = acc(cre, j), acc(cim, j)
            A('v_cvt_pk_bf16_f32 %s, %s, %s' % (v(p), v(dr), v(dr + 1)))
            A('v_cvt_pk_bf16_f32 %s, %s, %s' % (v(p + 1), v(dr + 2), v(dr + 3)))
            A('v_cvt_pk_bf16_f32 %s, %s, %s' % (v(p + 2), v(di), v(di + 1)))
            A('v_cvt_pk_bf16_f32 %s, %s, %s' % (v(p + 3), v(di + 2), v(di + 3)))
            A('buffer_store_dwordx4 %s, %s, %s, 0 offen offset:%d %s' % (v(p, 4), v(vYo), s(sY, 4), j * 192 + aa * 64, ST2))
            if j == 2:
                A.wait_all_lg()
                A('s_barrier')
        for j in keep:
            d = acc(csplit, j)
            if q == 0:
                A('v_cvt_pk_bf16_f32 %s, %s, %s' % (v(d), v(d), v(d + 1)))
                A('v_cvt_pk_bf16_f32 %s, %s, %s' % (v(d + 1), v(d + 2), v(d + 3)))
                A('ds_read_b64 %s, %s offset:%d' % (v(d + 2, 2), v(vEx), j * 512))
            else:
                A('v_cvt_pk_bf16_f32 %s, %s, %s' % (v(d + 3), v(d + 2), v(d + 3)))
                A('v_cvt_pk_bf16_f32 %s, %s, %s' % (v(d + 2), v(d), v(d + 1)))
                A('ds_read_b64 %s, %s offset:%d' % (v(d, 2), v(vEx), j * 512))
        for j in keep:
            d = acc(csplit, j)
            A('buffer_store_dwordx4 %s, %s, %s, 0 offen offset:%d %s' % (v(d, 4), v(vYo), s(sY, 4), j * 192 + 64, ST2))
        A('s_endpgm')
    A.label('K2_end')
    A('s_endpgm')
    accum = (nv + 3) // 4 * 4
    return A.text(), dict(vgpr=accum + 104, sgpr=64, accum=accum), EXO + 14 * 512


HEADER = """; Kernarg layout for this problem (40 bytes, ptrs only, base s[0:1]):
"""


def desc(name, d):
    return """.amdhsa_kernel %s
  .amdhsa_next_free_vgpr %d
  .amdhsa_next_free_sgpr %d
  .amdhsa_accum_offset %d
  .amdhsa_group_segment_fixed_size 0
  .amdhsa_kernarg_size 40
  .amdhsa_user_sgpr_count 2
  .amdhsa_user_sgpr_kernarg_segment_ptr 1
  .amdhsa_system_sgpr_workgroup_id_x 1
.end_amdhsa_kernel
""" % (name, d['vgpr'], d['sgpr'], d['accum'])


def main(out):
    k1, d1, l1 = gen_k1()
    k2, d2, l2 = gen_k2()
    k3, d3, l3 = gen_k3()
    which = knob('KS', '123')
    t = HEADER
    if '1' in which:
        t += '; @launch kernel=k1_kernel grid=(252,1,1) block=(256,1,1) lds=%d\n' % l1
    if '2' in which:
        t += '; @launch kernel=k2_kernel grid=(256,1,1) block=(256,1,1) lds=%d\n' % l2
    if '3' in which:
        t += '; @launch kernel=k3_kernel grid=(224,1,1) block=(256,1,1) lds=%d\n' % l3
    t += '.amdgcn_target "amdgcn-amd-amdhsa--gfx950"\n.text\n'
    t += k1 + k2 + k3
    t += '.section .rodata,"a"\n.p2align 6\n'
    t += desc('k1_kernel', d1) + '.p2align 6\n' + desc('k2_kernel', d2) + '.p2align 6\n' + desc('k3_kernel', d3)
    open(out, 'w').write(t)


if __name__ == '__main__':
    main(sys.argv[1])
```
